```python
import torch

def _softmax(x, axis=-1):
    return torch.softmax(x, dim=axis)
def _gelu(x):
    return torch.nn.functional.gelu(x, approximate="tanh")
def _silu(x):
    return torch.nn.functional.silu(x)
def _sigmoid(x):
    return torch.sigmoid(x)
def _layernorm(x, axis=-1, eps=1e-5):
    m = x.mean(dim=axis, keepdim=True)
    v = x.var(dim=axis, keepdim=True, unbiased=False)
    return (x - m) / torch.sqrt(v + eps)
def _scatter_add(tgt, idx, src, axis=0):
    return tgt.clone().index_add_(axis, idx, src)
def _segment_sum(src, seg, n):
    out = torch.zeros((n,) + src.shape[1:], dtype=src.dtype)
    return out.index_add_(0, seg, src)
def _pad(x, pw):
    flat = tuple(v for pair in reversed(pw) for v in pair)
    return torch.nn.functional.pad(x, flat)

kernel_name = 'standalone__mha_block_cached__near_ridge'

def setup_inputs():

    _w = (lambda a: (lambda t: t.to(torch.bfloat16) if t.is_floating_point() else t)(torch.as_tensor(a)))
    B, Sq, D = 16, 240, 448
    H, Sk, Dh = 16, 512, 256
    return {
        "x": _w((lambda *s: torch.randn(*s, dtype=torch.bfloat16) * 0.8)(B, Sq, D)),
        "k_cache": _w((lambda *s: torch.randn(*s, dtype=torch.bfloat16) * 0.8)(B, H, Sk, Dh)),
        "v_cache": _w((lambda *s: torch.randn(*s, dtype=torch.bfloat16) * 0.05)(B, H, Sk, Dh)),
        "wq": _w((lambda *s: torch.randn(*s, dtype=torch.bfloat16) * 0.8)(D, H * Dh) * (D ** -0.5)),
        "wo": _w((lambda *s: torch.randn(*s, dtype=torch.bfloat16) * 0.05)(H * Dh, D) * ((H * Dh) ** -0.5)),
    }

def reference(x, k_cache, v_cache, wq, wo):
    B, Sq, D = x.shape
    H, Dh = 16, 256
    q = (lambda x, *d: x.permute(*d))((x @ wq).reshape(B, Sq, H, Dh), 0, 2, 1, 3)
    scores = torch.einsum("bhqd,bhkd->bhqk", q, k_cache) * (Dh ** -0.5)
    p = _softmax(scores, axis=-1)
    o = torch.einsum("bhqk,bhkd->bhqd", p, v_cache)
    return (lambda x, *d: x.permute(*d))(o, 0, 2, 1, 3).reshape(B, Sq, H * Dh) @ wo
```

```python
import re

REG = re.compile(r'\b([vas])(\d+)\b|\b([vas])\[(\d+):(\d+)\]|\b(vcc|exec|m0|scc)\b')

def regs_of(tok):
    out = []
    for m in REG.finditer(tok):
        if m.group(1):
            out.append((m.group(1), int(m.group(2))))
        elif m.group(3):
            out += [(m.group(3), i) for i in range(int(m.group(4)), int(m.group(5)) + 1)]
        else:
            out.append((m.group(6), 0))
    return out

TRANS = ('v_exp_f32', 'v_rcp_f32', 'v_log_f32', 'v_rsq_f32', 'v_sqrt_f32')

class Ins:
    __slots__ = ('text', 'op', 'cls', 'dst', 'src', 'srcc', 'states', 'passes', 'data')
    def __init__(self, text):
        self.text = text
        t = text.split(';')[0].strip()
        self.op = t.split()[0] if t else ''
        rest = t[len(self.op):].strip()
        ops = [o.strip() for o in self._split(rest)] if rest else []
        op = self.op
        self.dst, self.src, self.srcc, self.data = [], [], [], []
        self.states, self.passes = 1, 0
        if op.endswith(':') or op.startswith('.') or not op:
            self.cls = 'label'; self.states = 0
        elif op == 's_nop':
            self.cls = 'nop'; self.states = int(ops[0], 0) + 1
        elif op.startswith('v_mfma'):
            self.cls = 'mfma'
            self.passes = 8 if '32x32x16' in op else 4
            self.dst = regs_of(ops[0]); self.src = regs_of(ops[1]) + regs_of(ops[2]); self.srcc = regs_of(ops[3])
        elif op.startswith('v_cmp'):
            self.cls = 'valu'; self.dst = regs_of(ops[0]); self.src = sum((regs_of(o) for o in ops[1:]), [])
        elif op.startswith('v_permlane32_swap'):
            self.cls = 'valu'; self.dst = regs_of(ops[0]) + regs_of(ops[1]); self.src = list(self.dst)
        elif op.startswith('v_'):
            self.cls = 'trans' if op.replace('_e32', '').replace('_e64', '') in TRANS else 'valu'
            self.dst = regs_of(ops[0]); self.src = sum((regs_of(o) for o in ops[1:]), [])
            if op.startswith('v_fmac') or op.startswith('v_writelane') or op.startswith('v_dot2c'):
                self.src += self.dst
            if op.startswith('v_cndmask') and len(ops) == 3:
                self.src.append(('vcc', 0))
        elif op.startswith('ds_read') or op.startswith('ds_bpermute'):
            self.cls = 'ds'; self.dst = regs_of(ops[0]); self.src = sum((regs_of(o) for o in ops[1:]), [])
        elif op.startswith('ds_'):
            self.cls = 'ds'; self.src = sum((regs_of(o) for o in ops), [])
        elif op.startswith('buffer_load') or op.startswith('global_load'):
            self.cls = 'vmem'
            if re.search(r'\blds\b', rest):
                self.src = sum((regs_of(o) for o in ops), []) + [('m0', 0)]
                self.cls = 'dma'
            else:
                self.dst = regs_of(ops[0]); self.src = sum((regs_of(o) for o in ops[1:]), [])
        elif op.startswith('buffer_store') or op.startswith('global_store'):
            self.cls = 'vmem'; self.src = sum((regs_of(o) for o in ops), [])
            if 'x4' in op or 'x3' in op:
                self.data = regs_of(ops[0])
        elif op.startswith('s_'):
            self.cls = 'salu'
            nodst = ('s_cmp', 's_waitcnt', 's_barrier', 's_branch', 's_cbranch', 's_endpgm', 's_setprio', 's_setpc', 's_sleep')
            if not op.startswith(nodst) and ops:
                self.dst = regs_of(ops[0]); self.src = sum((regs_of(o) for o in ops[1:]), [])
            else:
                self.src = sum((regs_of(o) for o in ops), [])
        else:
            raise ValueError('unknown op ' + text)
    @staticmethod
    def _split(s):
        out, depth, cur = [], 0, ''
        for ch in s:
            if ch in '[(': depth += 1
            if ch in '])': depth -= 1
            if ch == ',' and depth == 0:
                out.append(cur); cur = ''
            else:
                cur += ch
        out.append(cur)
        return out

class Asm:
    def __init__(self):
        self.ins = []
    def __call__(self, text):
        for line in text.strip('\n').split('\n'):
            line = line.strip()
            if not line: continue
            if line.startswith(';'):
                i = Ins(''); i.text = line; self.ins.append(i); continue
            self.ins.append(Ins(line))
    def text(self):
        out = []
        for i in self.ins:
            if i.cls == 'label' and (i.op.endswith(':') or i.op.startswith('.')):
                out.append(i.text)
            else:
                out.append('  ' + i.text)
        return '\n'.join(out) + '\n'
    def need(self, prod, cons):
        n = 0
        pd, cd = set(prod.dst), set(cons.dst)
        cs, cc = set(cons.src), set(cons.srcc)
        isv = prod.cls in ('valu', 'trans')
        if isv:
            pv = {r for r in pd if r[0] in 'va'}
            ps = {r for r in pd if r[0] == 's' or r[0] == 'vcc'}
            if cons.cls == 'mfma' and pv & (cs | cc): n = max(n, 2)
            if prod.cls == 'trans' and cons.cls == 'valu' and pv & cs: n = max(n, 1)
            if cons.op.startswith('v_permlane') and pv & cs: n = max(n, 2)
            if cons.op.startswith(('v_readfirstlane', 'v_readlane')) and pv & cs: n = max(n, 1)
            if 'dpp' in cons.text and pv & cs: n = max(n, 2)
            if ps & cs:
                if cons.cls in ('valu', 'trans'): n = max(n, 2)
                if cons.cls in ('vmem', 'dma'): n = max(n, 5)
                if cons.cls == 'salu' and not cons.op.startswith('s_cbranch'): n = max(n, 1)
            if ('exec', 0) in pd and cons.cls == 'mfma': n = max(n, 4)
            if prod.op.startswith('v_dot') and cons.op != prod.op and pv & (cs | cd | cc): n = max(n, 3)
        if prod.cls == 'salu' and ('m0', 0) in pd and cons.cls == 'dma': n = max(n, 1)
        if prod.cls == 'mfma':
            big = {4: 8, 8: 12}[prod.passes]
            if cons.cls == 'mfma':
                if pd & cs: n = max(n, big)
                if pd & cc:
                    if not (cons.srcc == prod.dst and cons.passes == prod.passes):
                        n = max(n, big - 2)
                if pd & cd and not (cons.srcc == prod.dst):
                    n = max(n, big - 2)
            elif cons.cls in ('valu', 'trans', 'vmem', 'ds', 'dma'):
                if pd & (cs | cd): n = max(n, big)
            if cons.cls in ('valu', 'trans') and set(prod.srcc) & cd:
                n = max(n, {4: 3, 8: 7}[prod.passes])
        if prod.data and set(prod.data) & cd:
            n = max(n, 2)
        return n
    def check(self, verbose=True):
        bad = 0
        L = self.ins
        for j, cons in enumerate(L):
            if cons.cls in ('label', 'nop'): continue
            dist = 0
            i = j - 1
            while i >= 0 and dist < 20:
                p = L[i]
                if p.cls != 'label':
                    nd = self.need(p, cons)
                    if nd > dist:
                        bad += 1
                        if verbose:
                            print(f'HAZARD need {nd} have {dist}: [{i}] {p.text}  ->  [{j}] {cons.text}')
                    dist += p.states
                i -= 1
        return bad
    def autopad(self):
        out = []
        for cons in self.ins:
            if cons.cls not in ('label', 'nop'):
                dist, worst = 0, 0
                i = len(out) - 1
                while i >= 0 and dist < 20:
                    p = out[i]
                    if p.cls != 'label':
                        worst = max(worst, self.need(p, cons) - dist)
                        dist += p.states
                    i -= 1
                while worst > 0:
                    k = min(worst, 16)
                    out.append(Ins(f's_nop {k-1}'))
                    worst -= k
            out.append(cons)
        self.ins = out
```

```python
import sys, math
from asmlib import Asm

class Cfg:
    cap_q = 4
    cap_s = 6
    cap_v = 4
    nt_kv = True
    T = 16.0
    k2_ns = 5
    mapping = 'b'
    prio = 0
cfg = Cfg()
for a in sys.argv[1:]:
    if '=' in a:
        k, v = a.split('=')
        old = getattr(cfg, k)
        setattr(cfg, k, type(old)(v) if not isinstance(old, bool) else v in ('1', 'True'))

SLOT = 16640
NSLOT = 9
WIN = 3 * SLOT
LDS1 = NSLOT * SLOT
WOF_OFF = 32 << 20
C_SCALE = math.log2(math.e) / 16.0

def fbits(x):
    import struct
    return struct.unpack('<I', struct.pack('<f', x))[0]

class Tracker:
    def __init__(self, a, name, mx):
        self.a, self.name, self.mx = a, name, mx
        self.tags, self.done = [], 0
    def issue(self, tag):
        self.tags.append(tag)
        assert len(self.tags) - self.done <= self.mx, (self.name, 'too many outstanding')
    def need(self, tag):
        idx = max(i for i, t in enumerate(self.tags) if t == tag)
        return None if idx < self.done else len(self.tags) - 1 - idx
    def wait(self, tag):
        n = self.need(tag)
        if n is not None:
            self.a(f's_waitcnt {self.name}({n})')
            self.done = len(self.tags) - n
    def wait_all(self):
        if self.done < len(self.tags):
            self.a(f's_waitcnt {self.name}(0)')
            self.done = len(self.tags)

def vr(b, n=4):
    return f'v[{b}:{b+n-1}]'

def gen_k1():
    a = Asm()
    name = 'mha_attn_kernel'
    a(f'.globl {name}\n.p2align 8\n.type {name},@function\n{name}:')
    SX, SK, SV, SWQ, SWO, SO, SWF = 4, 8, 12, 16, 20, 24, 28
    sW, sM0K, sM0V, sOff, sOff2, sC, sB, sH, sT0, sT1, sSelL, sSelH = 32, 33, 34, 35, 36, 37, 38, 39, 42, 43, 44, 45
    sRet = 40
    vKrd, vTr, voffK, voffW, voffV, voffO, vMx, vThr, vNegM, vL0, vL1, vT0, vT1, vX, vT2 = range(1, 16)
    vRl = vX
    QB, PB, SACC, FB = 16, 80, [208, 224], 240
    XB = 80
    ACCQ = [64, 192, 208, 224]
    QDST = {(0, 0): 16, (0, 1): 24, (0, 2): 32, (0, 3): 40, (1, 0): 64, (1, 1): 72, (1, 2): 48, (1, 3): 56}
    def qreg(kap):
        Tp, tp = kap // 2, kap % 2
        return QDST[(Tp // 4, Tp % 4)] + 4 * tp
    ACCO = [16, 32, 48, 64]
    srd = lambda s: f's[{s}:{s+3}]'
    nt = ' nt' if cfg.nt_kv else ''

    a(f'''
    s_cmp_ge_u32 s2, 256
    s_cbranch_scc1 {name}_exit
    s_load_dwordx8 s[48:55], s[0:1], 0
    s_load_dwordx2 s[56:57], s[0:1], 32
    s_load_dwordx2 s[58:59], s[0:1], 56
    v_lshrrev_b32 v1, 6, v0
    v_and_b32 v0, 63, v0
    s_and_b32 s{sT0}, s2, 7
    v_readfirstlane_b32 s{sW}, v1
    s_lshr_b32 s{sT1}, s2, 3
    ''')
    if cfg.mapping == 'b':
        a(f'''
        s_lshl_b32 s{sB}, s{sT0}, 1
        s_lshr_b32 s{sH}, s{sT1}, 4
        s_add_u32 s{sB}, s{sB}, s{sH}
        s_and_b32 s{sH}, s{sT1}, 15
        ''')
    elif cfg.mapping == 'h':
        a(f'''
        s_lshl_b32 s{sH}, s{sT0}, 1
        s_lshr_b32 s{sB}, s{sT1}, 4
        s_add_u32 s{sH}, s{sH}, s{sB}
        s_and_b32 s{sB}, s{sT1}, 15
        ''')
    else:
        a(f'''
        s_lshr_b32 s{sB}, s{sT0}, 1
        s_lshl_b32 s{sB}, s{sB}, 2
        s_lshr_b32 s{sH}, s{sT1}, 3
        s_add_u32 s{sB}, s{sB}, s{sH}
        s_and_b32 s{sH}, s{sT0}, 1
        s_lshl_b32 s{sH}, s{sH}, 3
        s_and_b32 s{sT1}, s{sT1}, 7
        s_add_u32 s{sH}, s{sH}, s{sT1}
        ''')
    a(f'''
    v_and_b32 v{vT0}, 31, v0
    v_lshrrev_b32 v{vT1}, 5, v0
    s_lshl_b32 s{sT0}, s{sW}, 5
    v_add_u32 v{vX}, s{sT0}, v{vT0}
    v_mul_u32_u24 v{vX}, 896, v{vX}
    v_lshl_add_u32 v{vX}, v{vT1}, 4, v{vX}
    ''')
    a(f'''
    v_lshrrev_b32 v{vT2}, 4, v0
    v_lshlrev_b32 v{vT2}, 2, v{vT2}
    s_lshr_b32 s{sT0}, s{sW}, 1
    s_and_b32 s{sT1}, s{sW}, 1
    s_mul_i32 s{sM0V}, s{sT0}, 4160
    s_lshl_b32 s{sOff}, s{sT1}, 11
    s_add_u32 s{sM0V}, s{sM0V}, s{sOff}
    s_lshl_b32 s{sT1}, s{sT1}, 5
    s_add_u32 s{sT0}, s{sT0}, s{sT1}
    v_add_u32 v{vT2}, s{sT0}, v{vT2}
    v_and_b32 v{voffV}, 15, v0
    v_lshlrev_b32 v{voffV}, 4, v{voffV}
    v_lshl_add_u32 v{voffW}, v{vT2}, 13, v{voffV}
    v_lshl_add_u32 v{voffV}, v{vT2}, 9, v{voffV}
    s_mul_i32 s{sM0K}, s{sW}, 2080
    s_lshl_b32 s{sT0}, s{sW}, 10
    v_lshlrev_b32 v{voffK}, 13, v{vT1}
    v_lshl_add_u32 v{voffK}, v{vT0}, 4, v{voffK}
    v_add_u32 v{voffK}, s{sT0}, v{voffK}
    s_waitcnt lgkmcnt(0)
    ''')
    a(f'''
    s_lshl_b32 s{sT0}, s{sH}, 9
    s_add_u32 s{SWQ}, s54, s{sT0}
    s_addc_u32 s{SWQ+1}, s55, 0
    s_sub_u32 s{SWQ+2}, {448*8192}, s{sT0}
    s_mov_b32 s{SWQ+3}, 0x20000
    s_mul_i32 s{sT0}, s{sB}, 215040
    s_add_u32 s{SX}, s48, s{sT0}
    s_addc_u32 s{SX+1}, s49, 0
    s_sub_u32 s{SX+2}, {16*215040}, s{sT0}
    s_mov_b32 s{SX+3}, 0x20000
    s_lshl_b32 s{sT0}, s{sB}, 4
    s_add_u32 s{sT0}, s{sT0}, s{sH}
    s_lshl_b32 s{sT0}, s{sT0}, 18
    s_add_u32 s{SK}, s50, s{sT0}
    s_addc_u32 s{SK+1}, s51, 0
    s_mov_b32 s{SK+2}, 0x40000
    s_mov_b32 s{SK+3}, 0x20000
    s_add_u32 s{SV}, s52, s{sT0}
    s_addc_u32 s{SV+1}, s53, 0
    s_mov_b32 s{SV+2}, 0x40000
    s_mov_b32 s{SV+3}, 0x20000
    ''')
    vm = Tracker(a, 'vmcnt', 62)
    lg = Tracker(a, 'lgkmcnt', 15)

    tiles = [('W', hh, t) for hh in range(2) for t in range(7)] + [('K', 0, t) for t in range(16)] + \
            [('V', cc, t) for cc in range(2) for t in range(8)]
    NT = len(tiles)
    slot_of = {}
    free = list(range(NSLOT))
    def dma_ops(g):
        kind, c, t = tiles[g]
        s = free.pop(0); slot_of[g] = s
        base = s * SLOT
        ops = []
        if kind == 'K':
            ops.append(f's_mov_b32 s{sOff}, {t*16384}')
            ops.append(f's_add_u32 m0, s{sM0K}, {base}')
            ops.append(f's_nop 0')
            ops.append((f'buffer_load_dwordx4 v{voffK}, {srd(SK)}, s{sOff} offen{nt} lds', ('tile', g)))
            ops.append(f's_add_u32 m0, s{sM0K}, {base + 1040 - 512}')
            ops.append(f's_nop 0')
            ops.append((f'buffer_load_dwordx4 v{voffK}, {srd(SK)}, s{sOff} offen offset:512{nt} lds', ('tile', g)))
        else:
            if kind == 'W':
                o0, o1, S, vo, fl = 64*t*8192 + c*256, (64*t+16)*8192 + c*256, SWQ, voffW, ''
            else:
                o0, o1, S, vo, fl = 64*t*512 + c*256, (64*t+16)*512 + c*256, SV, voffV, nt
            ops.append(f's_mov_b32 s{sOff}, {o0}')
            ops.append(f's_add_u32 m0, s{sM0V}, {base}')
            ops.append(f's_mov_b32 s{sOff2}, {o1}')
            ops.append((f'buffer_load_dwordx4 v{vo}, {srd(S)}, s{sOff} offen{fl} lds', ('tile', g)))
            ops.append(f's_add_u32 m0, s{sM0V}, {base + 1024}')
            ops.append(f's_nop 0')
            ops.append((f'buffer_load_dwordx4 v{vo}, {srd(S)}, s{sOff2} offen{fl} lds', ('tile', g)))
        return ops
    def emit_op(op):
        if isinstance(op, tuple):
            if op[0] == 'WAITVM':
                vm.wait(op[1]); return
            a(op[0]); vm.issue(op[1])
        else:
            a(op)
    def xload(ks):
        a(f'buffer_load_dwordx4 {vr(XB+4*ks)}, v{vX}, {srd(SX)}, 0 offen offset:{32*ks}'); vm.issue(('x', ks))

    KT0, VT0 = 14, 30
    for g in (0, 1):
        for op in dma_ops(g): emit_op(op)
    for ks in range(8): xload(ks)
    for g in (2, 3):
        for op in dma_ops(g): emit_op(op)
    for ks in range(8, 28): xload(ks)
    for op in dma_ops(KT0): emit_op(op)
    a(f'''
    s_mov_b32 s{SWO}, s56
    s_mov_b32 s{SWO+1}, s57
    s_mov_b32 s{SWO+2}, {4096*896}
    s_mov_b32 s{SWO+3}, 0x20000
    s_add_u32 s{SWF}, s58, {WOF_OFF}
    s_addc_u32 s{SWF+1}, s59, 0
    s_mov_b32 s{SWF+2}, {28*128*1024}
    s_mov_b32 s{SWF+3}, 0x20000
    s_mul_i32 s{sT0}, s{sB}, {15*131072}
    s_lshl_b32 s{sT1}, s{sH}, 13
    s_add_u32 s{sT0}, s{sT0}, s{sT1}
    s_add_u32 s{SO}, s58, s{sT0}
    s_addc_u32 s{SO+1}, s59, 0
    s_sub_u32 s{SO+2}, {15*131072}, s{sT1}
    s_mov_b32 s{SO+3}, 0x20000
    s_mov_b32 s{sC}, {fbits(C_SCALE):#x}
    s_mov_b32 s{sSelL}, 0x05040100
    s_mov_b32 s{sSelH}, 0x07060302
    ''')
    WOL, WOP, vWa, vWs = 16, 24, 32, 33
    a(f'''
    s_lshl_b32 s{sT0}, s{sW}, 6
    v_add_u32 v34, s{sT0}, v0
    v_min_u32 v34, 447, v34
    v_and_b32 v35, 3, v34
    v_bfe_u32 v36, v34, 2, 3
    v_lshrrev_b32 v37, 5, v34
    s_lshr_b32 s{sT0}, s2, 1
    s_and_b32 s{sT1}, s2, 1
    s_mul_i32 s{sT1}, s{sT1}, 14
    v_add_u32 v37, s{sT1}, v37
    v_lshrrev_b32 v38, 1, v35
    v_and_b32 v39, 1, v35
    v_lshlrev_b32 v38, 4, v38
    v_lshl_add_u32 v38, v39, 2, v38
    s_lshl_b32 s{sT1}, s{sT0}, 5
    v_add_u32 v38, s{sT1}, v38
    v_mul_u32_u24 v38, 896, v38
    v_lshl_add_u32 v{vWa}, v37, 5, v38
    v_lshl_add_u32 v{vWa}, v36, 2, v{vWa}
    v_lshlrev_b32 v{vWs}, 17, v37
    s_lshl_b32 s{sT1}, s{sT0}, 10
    v_add_u32 v{vWs}, s{sT1}, v{vWs}
    v_lshl_add_u32 v{vWs}, v35, 8, v{vWs}
    v_lshl_add_u32 v{vWs}, v36, 5, v{vWs}
    s_mov_b32 s{sT0}, {8*896}
    ''')
    for jj in range(8):
        so = '0' if jj < 4 else f's{sT0}'
        a(f'buffer_load_dword v{WOL+jj}, v{vWa}, {srd(SWO)}, {so} offen offset:{(jj&3)*896}'); vm.issue(('wo', jj))
    a(f'''
    v_and_b32 v{vKrd}, 15, v0
    v_mul_u32_u24 v{vKrd}, 1040, v{vKrd}
    v_bfe_u32 v{vT2}, v0, 4, 1
    v_lshl_add_u32 v{vKrd}, v{vT2}, 9, v{vKrd}
    v_lshl_add_u32 v{vKrd}, v{vT1}, 4, v{vKrd}
    v_bfe_u32 v{vTr}, v0, 2, 2
    v_mul_u32_u24 v{vTr}, 4160, v{vTr}
    v_lshl_add_u32 v{vTr}, v{vT2}, 5, v{vTr}
    v_mov_b32 v{vThr}, v{vTr}
    v_lshl_add_u32 v{vTr}, v{vT1}, 9, v{vTr}
    v_and_b32 v34, 1, v0
    v_lshl_add_u32 v{vTr}, v34, 4, v{vTr}
    v_bfe_u32 v34, v0, 1, 1
    v_lshl_add_u32 v{vTr}, v34, 3, v{vTr}
    v_lshl_add_u32 v{vThr}, v{vT1}, 8, v{vThr}
    v_and_b32 v34, 3, v0
    v_lshl_add_u32 v{vT2}, v34, 3, v{vThr}
    s_lshl_b32 s{sT0}, s{sW}, 1
    v_bfe_u32 v34, v0, 4, 1
    v_add_u32 v34, s{sT0}, v34
    v_lshlrev_b32 v{voffO}, 17, v34
    v_lshl_add_u32 v{voffO}, v{vT1}, 8, v{voffO}
    v_and_b32 v34, 15, v0
    v_lshl_add_u32 v{voffO}, v34, 4, v{voffO}
    v_mov_b32 v0, v{vT2}
    v_mov_b32 v{vL0}, 0
    v_mov_b32 v{vL1}, 0
    ''')
    vTrV = 0
    if cfg.prio:
        a(f's_cmp_ge_u32 s{sW}, 4\ns_cbranch_scc0 {name}_np\ns_setprio 1\n{name}_np:')

    M = []
    for g, (kind, c, t) in enumerate(tiles):
        if kind == 'K':
            for ks in range(16):
                M.append(dict(g=g, kind=kind, areg=vKrd, offs=[32*ks], B=qreg(ks), acc=SACC[t % 2], first=(ks == 0)))
        elif kind == 'W':
            for T in range(4):
                for ks in range(4):
                    M.append(dict(g=g, kind=kind, areg=vTr, offs=[(4*ks+j)*256 + T*64 for j in range(2)],
                                  B=XB+4*(4*t+ks), xk=4*t+ks, acc=ACCQ[T], first=(t == 0 and ks == 0), T=T, ks=ks))
        else:
            for T in range(4):
                for ks in range(4):
                    M.append(dict(g=g, kind=kind, areg=vTrV, offs=[(4*ks+2*j)*256 + T*64 for j in range(2)],
                                  B=PB+4*(4*t+ks), acc=ACCO[T], first=(t == 0 and ks == 0), T=T, ks=ks))
    NM = len(M)
    J_S, J_V = 14*16, 30*16
    F4 = [FB + 4*i for i in range(4)]
    R8 = F4 + [SACC[0] + 4*i for i in range(4)]
    prev_user = {}
    last = {}
    for j, m in enumerate(M):
        m['buf'] = F4[j % 4] if j < J_V else R8[(j - J_V) % 8]
        prev_user[j] = last.get(m['buf'], -1)
        last[m['buf']] = j
        m['avail'] = -1
        if j >= J_V and m['buf'] in R8[4:] and prev_user[j] < 0:
            m['avail'] = J_V
    win = {vKrd: 0, vTr: 0, vTrV: 0}
    def emit_reads(j):
        m = M[j]
        s = slot_of[m['g']]
        w = (s // 3) * WIN
        ar = m['areg']
        if win[ar] != w:
            d = w - win[ar]
            a(f'v_add_u32 v{ar}, {d}, v{ar}' if d > 0 else f'v_subrev_u32 v{ar}, {-d}, v{ar}')
            win[ar] = w
        base = s * SLOT - w
        if m['kind'] == 'K':
            a(f'ds_read_b128 {vr(m["buf"])}, v{ar} offset:{base + m["offs"][0]}'); lg.issue(j)
        else:
            for k in range(2):
                a(f'ds_read_b64_tr_b16 {vr(m["buf"]+2*k, 2)}, v{ar} offset:{base + m["offs"][k]}'); lg.issue(j)

    FQ = []
    def addf(e, d, ops):
        for op in ops: FQ.append((e, d, op))
    stubs = []
    def softmax_max(t):
        A = SACC[t % 2]
        ops = [f'v_max3_f32 v{vMx}, v{A}, v{A+1}, v{A+2}']
        for i in range(3, 15, 2):
            ops.append(f'v_max3_f32 v{vMx}, v{vMx}, v{A+i}, v{A+i+1}')
        ops.append(f'v_max_f32 v{vMx}, v{vMx}, v{A+15}')
        if t == 0:
            ops += [f'v_mov_b32 v{vT0}, v{vMx}',
                    f's_nop 1',
                    f'v_permlane32_swap_b32 v{vT0}, v{vMx}',
                    f'v_max_f32 v{vMx}, v{vMx}, v{vT0}',
                    f'v_mul_f32 v{vNegM}, s{sC}, v{vMx}',
                    f'v_ceil_f32 v{vNegM}, v{vNegM}',
                    f'v_add_f32 v{vThr}, {fbits(cfg.T):#x}, v{vNegM}',
                    f'v_mul_f32 v{vThr}, {fbits(1.0/C_SCALE):#x}, v{vThr}',
                    f'v_sub_f32 v{vNegM}, 0, v{vNegM}']
        else:
            ops += [f'v_cmp_gt_f32 vcc, v{vMx}, v{vThr}',
                    f's_cbranch_vccnz {name}_stub{t}\n{name}_ret{t}:']
            stubs.append(t)
        return ops
    def softmax_exp(t):
        A = SACC[t % 2]
        ops = []
        for q in range(4):
            r = [A + 4*q + i for i in range(4)]
            ops += [f'v_fma_f32 v{x}, v{x}, s{sC}, v{vNegM}' for x in r]
            ops += [f'v_exp_f32 v{x}, v{x}' for x in r]
            ops += [f'v_add_f32 v{vL0}, v{vL0}, v{r[0]}', f'v_add_f32 v{vL1}, v{vL1}, v{r[1]}',
                    f'v_cvt_pk_bf16_f32 v{PB+8*t+2*q}, v{r[0]}, v{r[1]}',
                    f'v_add_f32 v{vL0}, v{vL0}, v{r[2]}', f'v_add_f32 v{vL1}, v{vL1}, v{r[3]}',
                    f'v_cvt_pk_bf16_f32 v{PB+8*t+2*q+1}, v{r[2]}, v{r[3]}']
        return ops
    ops = [('WAITVM', ('wo', 7))]
    for k in range(4):
        ops.append(f'v_perm_b32 v{WOP+k}, v{WOL+2*k+1}, v{WOL+2*k}, s{sSelL}')
    for k in range(4):
        ops.append(f'v_perm_b32 v{WOP+4+k}, v{WOL+2*k+1}, v{WOL+2*k}, s{sSelH}')
    ops.append((f'buffer_store_dwordx4 {vr(WOP)}, v{vWs}, {srd(SWF)}, 0 offen', ('wost', 0)))
    ops.append((f'buffer_store_dwordx4 {vr(WOP+4)}, v{vWs}, {srd(SWF)}, 0 offen offset:16', ('wost', 1)))
    addf(3*16 + 2, 5*16, ops)
    for hh in range(2):
        jl = (7*hh + 6) * 16
        for T in range(4):
            A, D = ACCQ[T], QDST[(hh, T)]
            ops = [f'v_cvt_pk_bf16_f32 v{D+i}, v{A+2*i}, v{A+2*i+1}' for i in range(8)]
            e = jl + 4*T + 3 + 2
            if hh == 0:
                d = jl + 16 + 4*T
            else:
                d = {0: J_S + 8, 1: J_S + 10, 2: J_S, 3: J_S + 14}[T]
            addf(min(e, d - 1), d, ops)
    for t in range(16):
        j0 = J_S + 16*(t+1)
        if t < 15:
            addf(j0 + 1, j0 + 16, softmax_max(t) + softmax_exp(t))
        else:
            addf(j0 - 1, j0, softmax_max(t))
            addf(j0, j0 + 16*7, softmax_exp(t))
            addf(j0, j0 + 16*7, [f'v_add_f32 v{vL0}, v{vL0}, v{vL1}', f'v_mov_b32 v{vT0}, v{vL0}', 's_nop 1',
                                 f'v_permlane32_swap_b32 v{vT0}, v{vL0}', f'v_add_f32 v{vL0}, v{vL0}, v{vT0}',
                                 f'v_rcp_f32 v{vRl}, v{vL0}'])
    for cc in range(2):
        jl = J_V + (8*cc + 7) * 16
        for T in range(4):
            A, D = ACCO[T], SACC[1] + 8*(T % 2)
            ops = []
            if T == 0: ops.append(f's_mov_b32 s{sT0}, {cc*4096}')
            for u in range(2):
                for i in range(4):
                    x = A + 8*u + 2*i
                    ops += [f'v_mul_f32 v{x}, v{x}, v{vRl}', f'v_mul_f32 v{x+1}, v{x+1}, v{vRl}']
                for i in range(4):
                    x = A + 8*u + 2*i
                    ops.append(f'v_cvt_pk_bf16_f32 v{D+4*u+i}, v{x}, v{x+1}')
                ops.append((f'buffer_store_dwordx4 {vr(D+4*u)}, v{voffO}, {srd(SO)}, s{sT0} offen offset:{T*1024+u*512}', ('ost', cc, T, u)))
            e = jl + 4*T + 3 + 2
            d = jl + 16 + 4*T if cc == 0 else 10**9
            addf(min(e, d - 1), d, ops)
    FQ.sort(key=lambda x: x[0])
    issue = {g: [] for g in range(NT)}
    for g in range(1, 11): issue[g].append(g + 3)
    for i, g in enumerate((0, 2, 4, 6)): issue[g].append(KT0 + 1 + i)
    nxt = KT0 + 5
    for g in range(11, NT):
        if nxt < NT:
            issue[g].append(nxt); nxt += 1

    rd = 0
    fq = 0
    pend = []
    def pump_reads(i):
        nonlocal rd
        while rd < NM:
            m = M[rd]
            nr = 1 if m['kind'] == 'K' else 2
            if prev_user[rd] > i or m['avail'] > i: break
            if m['g'] > M[max(i, 0)]['g'] + 1: break
            if len(lg.tags) - lg.done + nr > 14: break
            emit_reads(rd); rd += 1
    vm.wait(('tile', 1))
    a('s_barrier')
    pump_reads(-1)
    for j, m in enumerate(M):
        g = m['g']
        if j % 16 == 0:
            if g > 0:
                for op in pend: emit_op(op)
                pend = []
                if g + 1 < NT: vm.wait(('tile', g + 1))
                a('s_barrier')
                free.append(slot_of[g - 1])
            for tg in issue[g]: pend += dma_ops(tg)
        while fq < len(FQ) and any(f[1] <= j for f in FQ[fq:fq+400]):
            emit_op(FQ[fq][2]); fq += 1
        if 'xk' in m and g < 7: vm.wait(('x', m['xk']))
        if rd <= j: pump_reads(j - 1)
        assert rd > j
        lg.wait(j)
        c = '0' if m['first'] else vr(m['acc'], 16)
        a(f'v_mfma_f32_32x32x16_bf16 {vr(m["acc"],16)}, {vr(m["buf"])}, {vr(m["B"])}, {c}')
        pump_reads(j)
        cap = cfg.cap_q if j < J_S else (cfg.cap_s if j < J_V + 16 else cfg.cap_v)
        n = 0
        while pend and n < 4:
            op = pend.pop(0); emit_op(op); n += 1
            if isinstance(op, tuple): break
        n = 0
        while fq < len(FQ) and FQ[fq][0] <= j and n < cap:
            emit_op(FQ[fq][2]); fq += 1; n += 1
    while fq < len(FQ):
        emit_op(FQ[fq][2]); fq += 1
    a(f'{name}_exit:\ns_endpgm')
    for t in stubs:
        a(f'{name}_stub{t}:\ns_call_b64 s[{sRet}:{sRet+1}], {name}_rescale\ns_branch {name}_ret{t}')
    a(f'''{name}_rescale:
    s_nop 7
    v_mov_b32 v{vT0}, v{vMx}
    s_nop 1
    v_permlane32_swap_b32 v{vT0}, v{vMx}
    v_max_f32 v{vMx}, v{vMx}, v{vT0}
    v_mul_f32 v{vT0}, s{sC}, v{vMx}
    v_ceil_f32 v{vT0}, v{vT0}
    v_sub_f32 v{vT1}, 0, v{vNegM}
    v_max_f32 v{vT0}, v{vT0}, v{vT1}
    v_sub_f32 v{vT1}, v{vT0}, v{vT1}
    v_min_f32 v{vT1}, {fbits(255.0):#x}, v{vT1}
    v_sub_f32 v{vNegM}, 0, v{vT0}
    v_add_f32 v{vThr}, {fbits(cfg.T):#x}, v{vT0}
    v_mul_f32 v{vThr}, {fbits(1.0/C_SCALE):#x}, v{vThr}
    v_cvt_u32_f32 v{vT1}, v{vT1}
    v_sub_u32 v{vT0}, 0, v{vT1}
    v_ldexp_f32 v{vL0}, v{vL0}, v{vT0}
    v_ldexp_f32 v{vL1}, v{vL1}, v{vT0}
    v_mul_u32_u24 v{vT1}, 0x800080, v{vT1}
    ''')
    for i in range(128):
        a(f'v_pk_sub_u16 v{PB+i}, v{PB+i}, v{vT1} clamp')
    a(f's_nop 7\ns_setpc_b64 s[{sRet}:{sRet+1}]')
    a.autopad()
    assert a.check() == 0
    kd = dict(vgpr=256, acc=256, sgpr=64)
    return name, a, kd

def gen_k2():
    a = Asm()
    name = 'mha_oproj_kernel'
    NS = cfg.k2_ns
    a(f'.globl {name}\n.p2align 8\n.type {name},@function\n{name}:')
    SOF, SWF, SOUT = 4, 8, 12
    sW, sQB, sCB, sT0, sT1 = 16, 17, 18, 19, 20
    sB0, sA0 = 24, 28
    voff, vT0, vT1, vLw, vLr, vOut = 1, 2, 3, 4, 5, 6
    ST0 = 8
    ACCOFF = ((ST0 + 44*NS + 3) // 4) * 4
    srd = lambda s: f's[{s}:{s+3}]'
    a(f'''
    s_cmp_ge_u32 s2, 240
    s_cbranch_scc1 {name}_exit
    s_load_dwordx2 s[40:41], s[0:1], 40
    s_load_dwordx2 s[42:43], s[0:1], 56
    v_lshrrev_b32 v1, 6, v0
    v_and_b32 v0, 63, v0
    s_and_b32 s{sT0}, s2, 7
    v_readfirstlane_b32 s{sW}, v1
    s_lshr_b32 s{sT1}, s2, 3
    s_mul_i32 s{sT0}, s{sT0}, 30
    s_add_u32 s{sT0}, s{sT0}, s{sT1}
    s_lshr_b32 s{sQB}, s{sT0}, 2
    s_and_b32 s{sCB}, s{sT0}, 3
    s_lshl_b32 s{sT0}, s{sW}, 15
    v_lshlrev_b32 v{voff}, 4, v0
    v_add_u32 v{voff}, s{sT0}, v{voff}
    s_waitcnt lgkmcnt(0)
    s_lshl_b32 s{sT0}, s{sQB}, 19
    s_add_u32 s{SOF}, s42, s{sT0}
    s_addc_u32 s{SOF+1}, s43, 0
    s_mov_b32 s{SOF+2}, {4*131072}
    s_mov_b32 s{SOF+3}, 0x20000
    s_mul_i32 s{sT0}, s{sCB}, {7*131072}
    s_add_u32 s{sT0}, s{sT0}, {WOF_OFF}
    s_add_u32 s{SWF}, s42, s{sT0}
    s_addc_u32 s{SWF+1}, s43, 0
    s_mov_b32 s{SWF+2}, {7*131072}
    s_mov_b32 s{SWF+3}, 0x20000
    ''')
    for i in range(4): a(f's_mov_b32 s{sB0+i}, {i*131072}')
    for i in range(7): a(f's_mov_b32 s{sA0+i}, {i*131072}')
    vm = Tracker(a, 'vmcnt', 62)
    lg = Tracker(a, 'lgkmcnt', 15)
    def breg(k, qt): return ST0 + 44*(k % NS) + 4*qt
    def areg(k, ct): return ST0 + 44*(k % NS) + 16 + 4*ct
    def acc(ct, qt): return 4*(4*ct + qt)
    def load_ops(k):
        ops = []
        if k % 4 == 0 and k > 0:
            ops += [f's_add_u32 s{sB0+i}, s{sB0+i}, 4096' for i in range(4)]
            ops += [f's_add_u32 s{sA0+i}, s{sA0+i}, 4096' for i in range(7)]
        for qt in range(4):
            ops.append((f'buffer_load_dwordx4 {vr(breg(k,qt))}, v{voff}, {srd(SOF)}, s{sB0+qt} offen offset:{(k%4)*1024}', ('b', k, qt)))
        for ct in range(7):
            ops.append((f'buffer_load_dwordx4 {vr(areg(k,ct))}, v{voff}, {srd(SWF)}, s{sA0+ct} offen offset:{(k%4)*1024}', ('a', k, ct)))
        return ops
    def emit_op(op):
        if isinstance(op, tuple):
            a(op[0]); vm.issue(op[1])
        else: a(op)
    for k in range(NS - 1):
        for op in load_ops(k): emit_op(op)
    a(f'''
    s_mov_b32 s{SOUT}, s40
    s_mov_b32 s{SOUT+1}, s41
    s_mov_b32 s{SOUT+2}, {3840*896}
    s_mov_b32 s{SOUT+3}, 0x20000
    s_lshl_b32 s{sT0}, s{sQB}, 6
    s_lshl_b32 s{sT1}, s{sW}, 4
    s_add_u32 s{sT0}, s{sT0}, s{sT1}
    v_and_b32 v{vT0}, 15, v0
    v_add_u32 v{vT0}, s{sT0}, v{vT0}
    v_mul_u32_u24 v{vOut}, 896, v{vT0}
    v_lshrrev_b32 v{vT1}, 4, v0
    v_lshl_add_u32 v{vOut}, v{vT1}, 3, v{vOut}
    s_mul_i32 s{sT0}, s{sCB}, 224
    v_add_u32 v{vOut}, s{sT0}, v{vOut}
    v_lshlrev_b32 v{vLw}, 4, v0
    s_mul_i32 s{sT0}, s{sW}, {21*1024}
    v_add_u32 v{vLr}, s{sT0}, v{vLw}
    ''')
    for k in range(32):
        pend = load_ops(k + NS - 1) if k + NS - 1 < 32 else []
        n = 0
        for ct in range(7):
            for qt in range(4):
                if qt == 0: vm.wait(('a', k, ct))
                c = '0' if k == 0 else f'a[{acc(ct,qt)}:{acc(ct,qt)+3}]'
                a(f'v_mfma_f32_16x16x32_bf16 a[{acc(ct,qt)}:{acc(ct,qt)+3}], {vr(areg(k,ct))}, {vr(breg(k,qt))}, {c}')
                n += 1
                if n % 2 == 0:
                    while pend:
                        op = pend.pop(0); emit_op(op)
                        if isinstance(op, tuple): break
        for op in pend: emit_op(op)
    a(f'v_add_u32 v{vT0}, 0x10000, v{vLw}')
    for w in range(4):
        a(f's_cmp_eq_u32 s{sW}, {w}\ns_cbranch_scc0 {name}_wr{w}')
        a('s_nop 7')
        cnt = 0
        for d in range(4):
            if d == w: continue
            sl = (w - d - 1) % 4
            for ct in range(7):
                off = d*21*1024 + sl*7*1024 + ct*1024
                ar = vLw if off < 65536 else vT0
                a(f'ds_write_b128 v{ar}, a[{acc(ct,d)}:{acc(ct,d)+3}] offset:{off % 65536}')
                cnt += 1
                if cnt == 14: a('s_waitcnt lgkmcnt(7)')
        for ct in range(7):
            for r in range(4):
                a(f'v_accvgpr_read_b32 v{ST0+96+4*ct+r}, a{acc(ct,w)+r}')
        a(f'{name}_wr{w}:')
    a('s_waitcnt lgkmcnt(0)\ns_barrier')
    R = ST0 + 96
    idx = [(sl, ct) for sl in range(3) for ct in range(7)]
    def rdn(n):
        sl, ct = idx[n]
        a(f'ds_read_b128 {vr(ST0+4*n)}, v{vLr} offset:{sl*7*1024+ct*1024}'); lg.issue((sl, ct))
    for n in range(14): rdn(n)
    for n, (sl, ct) in enumerate(idx):
        lg.wait((sl, ct))
        if n + 14 < 21: rdn(n + 14)
        for r in range(4):
            a(f'v_add_f32 v{R+4*ct+r}, v{R+4*ct+r}, v{ST0+4*n+r}')
    for ct in range(7):
        a(f'v_cvt_pk_bf16_f32 v{ST0+2*ct}, v{R+4*ct}, v{R+4*ct+1}')
        a(f'v_cvt_pk_bf16_f32 v{ST0+2*ct+1}, v{R+4*ct+2}, v{R+4*ct+3}')
        a(f'buffer_store_dwordx2 {vr(ST0+2*ct,2)}, v{vOut}, {srd(SOUT)}, 0 offen offset:{32*ct}')
    a(f'{name}_exit:\ns_endpgm')
    a.autopad()
    assert a.check() == 0
    kd = dict(vgpr=ACCOFF + 112, acc=ACCOFF, sgpr=48)
    return name, a, kd

def kdtext(name, kd):
    return f'''.p2align 6
.amdhsa_kernel {name}
  .amdhsa_next_free_vgpr {kd['vgpr']}
  .amdhsa_next_free_sgpr {kd['sgpr']}
  .amdhsa_accum_offset {kd['acc']}
  .amdhsa_group_segment_fixed_size 0
  .amdhsa_kernarg_size 64
  .amdhsa_user_sgpr_count 2
  .amdhsa_user_sgpr_kernarg_segment_ptr 1
  .amdhsa_system_sgpr_workgroup_id_x 1
.end_amdhsa_kernel
'''

def main(out):
    n1, a1, k1 = gen_k1()
    n2, a2, k2 = gen_k2()
    hdr = f'''; Fused MHA block (B16 Sq240 D448 H16 Sk512 Dh256), generated by a hand-written generator script.
; @launch kernel={n1} grid=(256,1,1) block=(512,1,1) lds={LDS1}
; @launch kernel={n2} grid=(240,1,1) block=(256,1,1) lds={84*1024}
.amdgcn_target "amdgcn-amd-amdhsa--gfx950"
.text
'''
    s = hdr + a1.text() + a2.text() + '.section .rodata,"a"\n' + kdtext(n1, k1) + kdtext(n2, k2)
    open(out, 'w').write(s)
    print('wrote', out, len(s), 'bytes;', len(a1.ins), len(a2.ins), 'lines')

if __name__ == '__main__':
    outs = [x for x in sys.argv[1:] if '=' not in x]
    main(outs[0] if outs else 'standalone__mha_block_cached__near_ridge.s')
```

```python
import sys, math
from asmlib import Asm

class Cfg:
    cap_q = 4
    cap_s = 6
    cap_v = 4
    nt_kv = True
    T = 16.0
    k2_ns = 5
    mapping = 'b'
    prio = 0
    stamps = 0
    dotsum = False
    kpre = '6,7,8,9'
    pkfma = False
    exp_noexp = False
    exp_nomax = False
    exp_nosm = False
    exp16 = False
    rt = False
    st2 = 0
    ostf = ''
    k2f = ''
    wcap_s = 5.6
    xzero = True
cfg = Cfg()
for a in sys.argv[1:]:
    if '=' in a:
        k, v = a.split('=')
        old = getattr(cfg, k)
        setattr(cfg, k, type(old)(v) if not isinstance(old, bool) else v in ('1', 'True'))

SLOT = 16640
NSLOT = 9
WIN = 3 * SLOT
LDS1 = NSLOT * SLOT
WOF_OFF = 32 << 20
C_SCALE = math.log2(math.e) / 16.0

def fbits(x):
    import struct
    return struct.unpack('<I', struct.pack('<f', x))[0]

class Tracker:
    def __init__(self, a, name, mx):
        self.a, self.name, self.mx = a, name, mx
        self.tags, self.done = [], 0
    def issue(self, tag):
        self.tags.append(tag)
        assert len(self.tags) - self.done <= self.mx, (self.name, 'too many outstanding')
    def need(self, tag):
        idx = max(i for i, t in enumerate(self.tags) if t == tag)
        return None if idx < self.done else len(self.tags) - 1 - idx
    def wait(self, tag):
        n = self.need(tag)
        if n is not None:
            self.a(f's_waitcnt {self.name}({n})')
            self.done = len(self.tags) - n
    def wait_all(self):
        if self.done < len(self.tags):
            self.a(f's_waitcnt {self.name}(0)')
            self.done = len(self.tags)

def vr(b, n=4):
    return f'v[{b}:{b+n-1}]'

def gen_k1():
    a = Asm()
    name = 'mha_attn_kernel'
    a(f'.globl {name}\n.p2align 8\n.type {name},@function\n{name}:')
    SX, SK, SV, SWQ, SWO, SO, SWF = 4, 8, 12, 16, 20, 24, 28
    sW, sM0K, sM0V, sOff, sOff2, sC, sB, sH, sT0, sT1, sSelL, sSelH = 32, 33, 34, 35, 36, 37, 38, 39, 42, 43, 44, 45
    sRet = 40
    sXA = 46
    sOne = 47
    vKrd, vTr, voffK, voffW, voffV, voffO, vMx, vThr, vNegM, vL0, vL1, vT0, vT1, vX, vT2 = range(1, 16)
    vRl = vX
    QB, PB, SACC, FB = 16, 80, [208, 224], 240
    XB = 80
    ACCQ = [64, 192, 208, 224]
    QDST = {(0, 0): 16, (0, 1): 24, (0, 2): 32, (0, 3): 40, (1, 0): 64, (1, 1): 72, (1, 2): 48, (1, 3): 56}
    def qreg(kap):
        Tp, tp = kap // 2, kap % 2
        return QDST[(Tp // 4, Tp % 4)] + 4 * tp
    ACCO = [16, 32, 48, 64]
    srd = lambda s: f's[{s}:{s+3}]'
    nt = ' nt' if cfg.nt_kv else ''

    a(f'''
    s_cmp_ge_u32 s2, 256
    s_cbranch_scc1 {name}_exit
    s_load_dwordx8 s[48:55], s[0:1], 0
    s_load_dwordx2 s[56:57], s[0:1], 32
    s_load_dwordx2 s[58:59], s[0:1], 56
    s_memtime s[100:101]
    v_lshrrev_b32 v1, 6, v0
    v_and_b32 v0, 63, v0
    s_and_b32 s{sT0}, s2, 7
    v_readfirstlane_b32 s{sW}, v1
    s_lshr_b32 s{sT1}, s2, 3
    '''.replace('s_memtime s[100:101]', 's_memtime s[100:101]\ns_memrealtime s[98:99]' if cfg.stamps else ''))
    if cfg.mapping == 'b':
        a(f'''
        s_lshl_b32 s{sB}, s{sT0}, 1
        s_lshr_b32 s{sH}, s{sT1}, 4
        s_add_u32 s{sB}, s{sB}, s{sH}
        s_and_b32 s{sH}, s{sT1}, 15
        ''')
    elif cfg.mapping == 'h':
        a(f'''
        s_lshl_b32 s{sH}, s{sT0}, 1
        s_lshr_b32 s{sB}, s{sT1}, 4
        s_add_u32 s{sH}, s{sH}, s{sB}
        s_and_b32 s{sB}, s{sT1}, 15
        ''')
    else:
        a(f'''
        s_lshr_b32 s{sB}, s{sT0}, 1
        s_lshl_b32 s{sB}, s{sB}, 2
        s_lshr_b32 s{sH}, s{sT1}, 3
        s_add_u32 s{sB}, s{sB}, s{sH}
        s_and_b32 s{sH}, s{sT0}, 1
        s_lshl_b32 s{sH}, s{sH}, 3
        s_and_b32 s{sT1}, s{sT1}, 7
        s_add_u32 s{sH}, s{sH}, s{sT1}
        ''')
    a(f'''
    v_and_b32 v{vT0}, 31, v0
    v_lshrrev_b32 v{vT1}, 5, v0
    s_lshl_b32 s{sT0}, s{sW}, 5
    v_lshrrev_b32 v44, 4, v0
    v_add_u32 v45, s{sT0}, v44
    v_mul_u32_u24 v45, 896, v45
    v_and_b32 v46, 15, v0
    v_xor_b32 v46, v46, v44
    v_lshl_add_u32 v40, v46, 4, v45
    v_xor_b32 v47, 4, v46
    v_lshl_add_u32 v41, v47, 4, v45
    v_add_u32 v41, {4*896}, v41
    v_xor_b32 v47, 8, v46
    v_lshl_add_u32 v42, v47, 4, v45
    v_add_u32 v42, {8*896}, v42
    v_xor_b32 v47, 12, v46
    v_lshl_add_u32 v43, v47, 4, v45
    v_add_u32 v43, {12*896}, v43
    s_lshl_b32 s{sXA}, s{sW}, 13
    s_add_u32 s{sXA}, s{sXA}, {5*SLOT}
    v_and_b32 v{vX}, 15, v0
    v_xor_b32 v{vX}, v{vX}, v{vT1}
    v_lshlrev_b32 v{vX}, 4, v{vX}
    v_lshl_add_u32 v{vX}, v{vT0}, 8, v{vX}
    v_add_u32 v{vX}, s{sXA}, v{vX}
    ''')
    a(f'''
    v_lshrrev_b32 v{vT2}, 4, v0
    v_lshlrev_b32 v{vT2}, 2, v{vT2}
    s_lshr_b32 s{sT0}, s{sW}, 1
    s_and_b32 s{sT1}, s{sW}, 1
    s_mul_i32 s{sM0V}, s{sT0}, 4160
    s_lshl_b32 s{sOff}, s{sT1}, 11
    s_add_u32 s{sM0V}, s{sM0V}, s{sOff}
    s_lshl_b32 s{sT1}, s{sT1}, 5
    s_add_u32 s{sT0}, s{sT0}, s{sT1}
    v_add_u32 v{vT2}, s{sT0}, v{vT2}
    v_and_b32 v{voffV}, 15, v0
    v_lshlrev_b32 v{voffV}, 4, v{voffV}
    v_lshl_add_u32 v{voffW}, v{vT2}, 13, v{voffV}
    v_lshl_add_u32 v{voffV}, v{vT2}, 9, v{voffV}
    s_mul_i32 s{sM0K}, s{sW}, 2080
    s_lshl_b32 s{sT0}, s{sW}, 10
    v_lshlrev_b32 v{voffK}, 13, v{vT1}
    v_lshl_add_u32 v{voffK}, v{vT0}, 4, v{voffK}
    v_add_u32 v{voffK}, s{sT0}, v{voffK}
    s_waitcnt lgkmcnt(0)
    ''')
    a(f'''
    s_lshl_b32 s{sT0}, s{sH}, 9
    s_add_u32 s{SWQ}, s54, s{sT0}
    s_addc_u32 s{SWQ+1}, s55, 0
    s_sub_u32 s{SWQ+2}, {448*8192}, s{sT0}
    s_mov_b32 s{SWQ+3}, 0x20000
    s_mul_i32 s{sT0}, s{sB}, 215040
    s_add_u32 s{SX}, s48, s{sT0}
    s_addc_u32 s{SX+1}, s49, 0
    s_sub_u32 s{SX+2}, {16*215040}, s{sT0}
    {'s_mov_b32 s%d, 215040' % (SX+2) if cfg.xzero else ''}
    s_mov_b32 s{SX+3}, 0x20000
    s_lshl_b32 s{sT0}, s{sB}, 4
    s_add_u32 s{sT0}, s{sT0}, s{sH}
    s_lshl_b32 s{sT0}, s{sT0}, 18
    s_add_u32 s{SK}, s50, s{sT0}
    s_addc_u32 s{SK+1}, s51, 0
    s_mov_b32 s{SK+2}, 0x40000
    s_mov_b32 s{SK+3}, 0x20000
    s_add_u32 s{SV}, s52, s{sT0}
    s_addc_u32 s{SV+1}, s53, 0
    s_mov_b32 s{SV+2}, 0x40000
    s_mov_b32 s{SV+3}, 0x20000
    ''')
    vm = Tracker(a, 'vmcnt', 62)
    lg = Tracker(a, 'lgkmcnt', 15)

    tiles = [('W', hh, t) for hh in range(2) for t in range(7)] + [('K', 0, t) for t in range(16)] + \
            [('V', cc, t) for cc in range(2) for t in range(8)]
    NT = len(tiles)
    slot_of = {}
    free = list(range(5))
    def dma_ops(g):
        kind, c, t = tiles[g]
        s = free.pop(0); slot_of[g] = s
        base = s * SLOT
        ops = []
        if kind == 'K':
            ops.append((f's_add_u32 m0, s{sM0K}, {base}\ns_mov_b32 s{sOff}, {t*16384}\n'
                        f'buffer_load_dwordx4 v{voffK}, {srd(SK)}, s{sOff} offen{nt} lds', ('tile', g)))
            ops.append((f's_add_u32 m0, s{sM0K}, {base + 1040 - 512}\ns_mov_b32 s{sOff}, {t*16384}\n'
                        f'buffer_load_dwordx4 v{voffK}, {srd(SK)}, s{sOff} offen offset:512{nt} lds', ('tile', g)))
        else:
            if kind == 'W':
                o0, o1, S, vo, fl = 64*t*8192 + c*256, (64*t+16)*8192 + c*256, SWQ, voffW, ''
            else:
                o0, o1, S, vo, fl = 64*t*512 + c*256, (64*t+16)*512 + c*256, SV, voffV, nt
            ops.append((f's_add_u32 m0, s{sM0V}, {base}\ns_mov_b32 s{sOff}, {o0}\n'
                        f'buffer_load_dwordx4 v{vo}, {srd(S)}, s{sOff} offen{fl} lds', ('tile', g)))
            ops.append((f's_add_u32 m0, s{sM0V}, {base + 1024}\ns_mov_b32 s{sOff}, {o1}\n'
                        f'buffer_load_dwordx4 v{vo}, {srd(S)}, s{sOff} offen{fl} lds', ('tile', g)))
        return ops
    def emit_op(op):
        if isinstance(op, tuple):
            if op[0] == 'WAITVM':
                vm.wait(op[1]); return
            if op[0] == 'WAITLG':
                lg.wait(op[1]); return
            if op[0] == 'DS':
                if len(lg.tags) - lg.done >= 14:
                    lg.wait(lg.tags[lg.done + 1])
                a(op[1]); lg.issue(op[2]); return
            a(op[0]); vm.issue(op[1])
        else:
            a(op)
    def xdma_ops(p):
        ops = []
        for i in range(8):
            ops.append((f's_add_u32 m0, s{sXA}, {1024*i}\ns_mov_b32 s{sT1}, {14336*(i>>2) + 256*p}\n'
                        f'buffer_load_dwordx4 v{40+(i&3)}, {srd(SX)}, s{sT1} offen lds', ('xp', p)))
        return ops
    def xread_ops(p):
        ops = [('WAITVM', ('xp', p))]
        for k in range(8 if p < 3 else 4):
            t = 44 + (k & 3)
            ops.append(f'v_xor_b32 v{t}, {32*k}, v{vX}')
            ops.append(('DS', f'ds_read_b128 {vr(XB+4*(8*p+k))}, v{t}', ('x', 8*p+k)))
        ops.append(('WAITLG', ('x', 8*p + (7 if p < 3 else 3))))
        return ops

    KT0, VT0 = 14, 30
    for g in (0, 1):
        for op in dma_ops(g): emit_op(op)
    for op in xdma_ops(0): emit_op(op)
    for g in (2, 3):
        for op in dma_ops(g): emit_op(op)
    for op in dma_ops(KT0): emit_op(op)
    a(f'''
    s_mov_b32 s{SWO}, s56
    s_mov_b32 s{SWO+1}, s57
    s_mov_b32 s{SWO+2}, {4096*896}
    s_mov_b32 s{SWO+3}, 0x20000
    s_add_u32 s{SWF}, s58, {WOF_OFF}
    s_addc_u32 s{SWF+1}, s59, 0
    s_mov_b32 s{SWF+2}, {28*128*1024}
    s_mov_b32 s{SWF+3}, 0x20000
    s_mul_i32 s{sT0}, s{sB}, {15*131072}
    s_lshl_b32 s{sT1}, s{sH}, 13
    s_add_u32 s{sT0}, s{sT0}, s{sT1}
    s_add_u32 s{SO}, s58, s{sT0}
    s_addc_u32 s{SO+1}, s59, 0
    s_sub_u32 s{SO+2}, {15*131072}, s{sT1}
    s_mov_b32 s{SO+3}, 0x20000
    s_mov_b32 s{sC}, {fbits(C_SCALE):#x}
    s_mov_b32 s{sSelL}, 0x05040100
    s_mov_b32 s{sSelH}, 0x07060302
    s_mov_b32 s{sOne}, 0x3f803f80
    ''')
    WOL, WOP, vWa, vWs = 16, 24, 32, 33
    a(f'''
    s_lshl_b32 s{sT0}, s{sW}, 6
    v_add_u32 v34, s{sT0}, v0
    v_min_u32 v34, 447, v34
    v_and_b32 v35, 3, v34
    v_bfe_u32 v36, v34, 2, 3
    v_lshrrev_b32 v37, 5, v34
    s_lshr_b32 s{sT0}, s2, 1
    s_and_b32 s{sT1}, s2, 1
    s_mul_i32 s{sT1}, s{sT1}, 14
    v_add_u32 v37, s{sT1}, v37
    v_lshrrev_b32 v38, 1, v35
    v_and_b32 v39, 1, v35
    v_lshlrev_b32 v38, 4, v38
    v_lshl_add_u32 v38, v39, 2, v38
    s_lshl_b32 s{sT1}, s{sT0}, 5
    v_add_u32 v38, s{sT1}, v38
    v_mul_u32_u24 v38, 896, v38
    v_lshl_add_u32 v{vWa}, v37, 5, v38
    v_lshl_add_u32 v{vWa}, v36, 2, v{vWa}
    v_lshlrev_b32 v{vWs}, 17, v37
    s_lshl_b32 s{sT1}, s{sT0}, 10
    v_add_u32 v{vWs}, s{sT1}, v{vWs}
    v_lshl_add_u32 v{vWs}, v35, 8, v{vWs}
    v_lshl_add_u32 v{vWs}, v36, 5, v{vWs}
    s_mov_b32 s{sT0}, {8*896}
    ''')
    for jj in range(8):
        so = '0' if jj < 4 else f's{sT0}'
        a(f'buffer_load_dword v{WOL+jj}, v{vWa}, {srd(SWO)}, {so} offen offset:{(jj&3)*896}'); vm.issue(('wo', jj))
    a(f'''
    v_and_b32 v{vKrd}, 15, v0
    v_mul_u32_u24 v{vKrd}, 1040, v{vKrd}
    v_bfe_u32 v{vT2}, v0, 4, 1
    v_lshl_add_u32 v{vKrd}, v{vT2}, 9, v{vKrd}
    v_lshl_add_u32 v{vKrd}, v{vT1}, 4, v{vKrd}
    v_bfe_u32 v{vTr}, v0, 2, 2
    v_mul_u32_u24 v{vTr}, 4160, v{vTr}
    v_lshl_add_u32 v{vTr}, v{vT2}, 5, v{vTr}
    v_mov_b32 v{vThr}, v{vTr}
    v_lshl_add_u32 v{vTr}, v{vT1}, 9, v{vTr}
    v_and_b32 v34, 1, v0
    v_lshl_add_u32 v{vTr}, v34, 4, v{vTr}
    v_bfe_u32 v34, v0, 1, 1
    v_lshl_add_u32 v{vTr}, v34, 3, v{vTr}
    v_lshl_add_u32 v{vThr}, v{vT1}, 8, v{vThr}
    v_and_b32 v34, 3, v0
    v_lshl_add_u32 v{vT2}, v34, 3, v{vThr}
    s_lshl_b32 s{sT0}, s{sW}, 1
    v_bfe_u32 v34, v0, 4, 1
    v_add_u32 v34, s{sT0}, v34
    v_lshlrev_b32 v{voffO}, 17, v34
    v_lshl_add_u32 v{voffO}, v{vT1}, 8, v{voffO}
    v_and_b32 v34, 15, v0
    v_lshl_add_u32 v{voffO}, v34, 4, v{voffO}
    v_mov_b32 v0, v{vT2}
    v_mov_b32 v{vL0}, 0
    v_mov_b32 v{vL1}, 0
    ''')
    vTrV = 0
    if cfg.prio:
        a(f's_cmp_ge_u32 s{sW}, 4\ns_cbranch_scc0 {name}_np\ns_setprio 1\n{name}_np:')

    M = []
    for g, (kind, c, t) in enumerate(tiles):
        if kind == 'K':
            for ks in range(16):
                M.append(dict(g=g, kind=kind, areg=vKrd, offs=[32*ks], B=qreg(ks), acc=SACC[t % 2], first=(ks == 0)))
        elif kind == 'W':
            for T in range(4):
                for ks in range(4):
                    M.append(dict(g=g, kind=kind, areg=vTr, offs=[(4*ks+j)*256 + T*64 for j in range(2)],
                                  B=XB+4*(4*t+ks), xk=4*t+ks, acc=ACCQ[T], first=(t == 0 and ks == 0), T=T, ks=ks))
        else:
            for T in range(4):
                for ks in range(4):
                    M.append(dict(g=g, kind=kind, areg=vTrV, offs=[(4*ks+2*j)*256 + T*64 for j in range(2)],
                                  B=PB+4*(4*t+ks), acc=ACCO[T], first=(t == 0 and ks == 0), T=T, ks=ks))
    NM = len(M)
    J_S, J_V = 14*16, 30*16
    F4 = [FB + 4*i for i in range(4)]
    R8 = F4 + [SACC[0] + 4*i for i in range(4)]
    prev_user = {}
    last = {}
    for j, m in enumerate(M):
        m['buf'] = F4[j % 4] if j < J_V else R8[(j - J_V) % 8]
        prev_user[j] = last.get(m['buf'], -1)
        last[m['buf']] = j
        m['avail'] = -1
        if j >= J_V and m['buf'] in R8[4:] and prev_user[j] < 0:
            m['avail'] = J_V
    win = {vKrd: 0, vTr: 0, vTrV: 0}
    def emit_reads(j):
        m = M[j]
        s = slot_of[m['g']]
        w = (s // 3) * WIN
        ar = m['areg']
        if win[ar] != w:
            d = w - win[ar]
            a(f'v_add_u32 v{ar}, {d}, v{ar}' if d > 0 else f'v_subrev_u32 v{ar}, {-d}, v{ar}')
            win[ar] = w
        base = s * SLOT - w
        if m['kind'] == 'K':
            a(f'ds_read_b128 {vr(m["buf"])}, v{ar} offset:{base + m["offs"][0]}'); lg.issue(j)
        else:
            for k in range(2):
                a(f'ds_read_b64_tr_b16 {vr(m["buf"]+2*k, 2)}, v{ar} offset:{base + m["offs"][k]}'); lg.issue(j)

    FQ = []
    def addf(e, d, ops):
        for op in ops: FQ.append((e, d, op))
    stubs = []
    def softmax_max(t):
        A = SACC[t % 2]
        ops = [f'v_max3_f32 v{vMx}, v{A}, v{A+1}, v{A+2}']
        for i in range(3, 15, 2):
            ops.append(f'v_max3_f32 v{vMx}, v{vMx}, v{A+i}, v{A+i+1}')
        ops.append(f'v_max_f32 v{vMx}, v{vMx}, v{A+15}')
        if t == 0:
            ops += [f'v_mov_b32 v{vT0}, v{vMx}',
                    f's_nop 1',
                    f'v_permlane32_swap_b32 v{vT0}, v{vMx}',
                    f'v_max_f32 v{vMx}, v{vMx}, v{vT0}',
                    f'v_mul_f32 v{vNegM}, s{sC}, v{vMx}',
                    f'v_ceil_f32 v{vNegM}, v{vNegM}',
                    f'v_add_f32 v{vThr}, {fbits(cfg.T):#x}, v{vNegM}',
                    f'v_mul_f32 v{vThr}, {fbits(1.0/C_SCALE):#x}, v{vThr}',
                    f'v_sub_f32 v{vNegM}, 0, v{vNegM}']
        else:
            ops += [f'v_cmp_gt_f32 vcc, v{vMx}, v{vThr}',
                    f's_cbranch_vccnz {name}_stub{t}\n{name}_ret{t}:']
            stubs.append(t)
        return ops
    def softmax_exp(t):
        A = SACC[t % 2]
        ops = []
        for i in range(16 + 3):
            if i < 16: ops.append(f'v_fma_f32 v{A+i}, v{A+i}, s{sC}, v{vNegM}')
            k = i - 1
            if 0 <= k < 16 and not cfg.exp_noexp: ops.append(f'v_exp_f32 v{A+k}, v{A+k}')
            k = i - 3
            if 0 <= k < 16:
                L = vL0 if k % 2 == 0 else vL1
                if not cfg.dotsum: ops.append(f'v_add_f32 v{L}, v{L}, v{A+k}')
                if k % 2 == 1: ops.append(f'v_cvt_pk_bf16_f32 v{PB+8*t+k//2}, v{A+k-1}, v{A+k}')
        return ops
    ops = [('WAITVM', ('wo', 7))]
    for k in range(4):
        ops.append(f'v_perm_b32 v{WOP+k}, v{WOL+2*k+1}, v{WOL+2*k}, s{sSelL}')
    for k in range(4):
        ops.append(f'v_perm_b32 v{WOP+4+k}, v{WOL+2*k+1}, v{WOL+2*k}, s{sSelH}')
    ops.append((f'buffer_store_dwordx4 {vr(WOP)}, v{vWs}, {srd(SWF)}, 0 offen', ('wost', 0)))
    ops.append((f'buffer_store_dwordx4 {vr(WOP+4)}, v{vWs}, {srd(SWF)}, 0 offen offset:16', ('wost', 1)))
    addf(3*16 + 2, 5*16, ops)
    for p in range(1, 4):
        addf(32*p - 10, 32*p, xread_ops(p) + (xdma_ops(p + 1) if p < 3 else []))
    for hh in range(2):
        jl = (7*hh + 6) * 16
        for T in range(4):
            A, D = ACCQ[T], QDST[(hh, T)]
            ops = [f'v_cvt_pk_bf16_f32 v{D+i}, v{A+2*i}, v{A+2*i+1}' for i in range(8)]
            e = jl + 4*T + 3 + 2
            if hh == 0:
                d = jl + 16 + 4*T
            else:
                d = {0: J_S + 8, 1: J_S + 10, 2: J_S, 3: J_S + 14}[T]
            addf(min(e, d - 1), d, ops)
    for t in range(16):
        j0 = J_S + 16*(t+1)
        if t < 15:
            addf(j0 + 1, j0 + 16, ([] if (cfg.exp_nomax or cfg.exp_nosm) and t > 0 else softmax_max(t)) + ([] if cfg.exp_nosm else softmax_exp(t)))
        else:
            addf(j0 - 1, j0, softmax_max(t))
            addf(j0, j0 + 16*7, softmax_exp(t))
            if cfg.dotsum:
                for i in range(128):
                    addf(j0 + 10 + (i * 3) // 4, j0 + 16*7, [f'v_dot2c_f32_bf16 v{vL0 if i % 2 == 0 else vL1}, s{sOne}, v{PB+i}'])
            addf(j0 + 106, j0 + 16*7, [f'v_add_f32 v{vL0}, v{vL0}, v{vL1}', f'v_mov_b32 v{vT0}, v{vL0}', 's_nop 1',
                                 f'v_permlane32_swap_b32 v{vT0}, v{vL0}', f'v_add_f32 v{vL0}, v{vL0}, v{vT0}',
                                 f'v_rcp_f32 v{vRl}, v{vL0}'])
    for cc in range(2):
        jl = J_V + (8*cc + 7) * 16
        for T in range(4):
            A, D = ACCO[T], SACC[1] + 8*(T % 2)
            ops = []
            if T == 0: ops.append(f's_mov_b32 s{sT0}, {cc*4096}')
            for u in range(2):
                for i in range(4):
                    x = A + 8*u + 2*i
                    ops += [f'v_mul_f32 v{x}, v{x}, v{vRl}', f'v_mul_f32 v{x+1}, v{x+1}, v{vRl}']
                for i in range(4):
                    x = A + 8*u + 2*i
                    ops.append(f'v_cvt_pk_bf16_f32 v{D+4*u+i}, v{x}, v{x+1}')
                ops.append((f'buffer_store_dwordx4 {vr(D+4*u)}, v{voffO}, {srd(SO)}, s{sT0} offen offset:{T*1024+u*512} {cfg.ostf.replace("+"," ")}', ('ost', cc, T, u)))
            e = jl + 4*T + 3 + 2
            d = jl + 16 + 4*T if cc == 0 else 10**9
            addf(min(e, d - 1), d, ops)
    FQ.sort(key=lambda x: x[0])
    issue = {g: [] for g in range(NT)}
    for g in range(1, 11): issue[g].append(g + 3)
    for i, g in enumerate(int(x) for x in cfg.kpre.split(',')): issue[g].append(KT0 + 1 + i)
    nxt = KT0 + 5
    for g in range(11, NT):
        if nxt < NT:
            issue[g].append(nxt); nxt += 1

    rd = 0
    fq = 0
    pend = []
    credit = [0.0]
    def pump_reads(i):
        nonlocal rd
        while rd < NM:
            m = M[rd]
            nr = 1 if m['kind'] == 'K' else 2
            if prev_user[rd] > i or m['avail'] > i: break
            if m['g'] > M[max(i, 0)]['g'] + 1: break
            if len(lg.tags) - lg.done + nr > 14: break
            emit_reads(rd); rd += 1
    nst = [0]
    if cfg.stamps:
        a('s_mov_b32 s62, s98' if cfg.rt else 's_mov_b32 s62, s100'); nst[0] = 1
    def stamp():
        if not cfg.stamps: return
        lg.wait_all()
        a(f's_{"memrealtime" if cfg.rt else "memtime"} s[60:61]\ns_waitcnt lgkmcnt(0)\ns_mov_b32 s{62+nst[0]}, s60'); nst[0] += 1
    stamp()
    vm.wait(('xp', 0))
    a('s_barrier')
    stamp()
    for op in xread_ops(0)[:-1]: emit_op(op)
    pump_reads(-1)
    lg.wait(('x', 7))
    pend += xdma_ops(1)
    for j, m in enumerate(M):
        g = m['g']
        if j % 16 == 0:
            if g > 0:
                for op in pend: emit_op(op)
                pend = []
                if g + 1 < NT: vm.wait(('tile', g + 1))
                a('s_barrier')
                if cfg.stamps and g % cfg.stamps == 0: stamp()
                free.append(slot_of[g - 1])
                if g == 6: free.extend([5, 6, 7, 8])
            for tg in issue[g]: pend += dma_ops(tg)
        while fq < len(FQ) and any(f[1] <= j for f in FQ[fq:fq+400]):
            emit_op(FQ[fq][2]); fq += 1
        if 'xk' in m and g < 7: lg.wait(('x', m['xk']))
        if rd <= j: pump_reads(j - 1)
        assert rd > j
        lg.wait(j)
        c = '0' if m['first'] else vr(m['acc'], 16)
        if cfg.exp16:
            o = 8 * (j % 2)
            for z in range(2):
                c = '0' if m['first'] else vr(m['acc'] + o + 4*z)
                a(f'v_mfma_f32_16x16x32_bf16 {vr(m["acc"] + o + 4*z)}, {vr(m["buf"])}, {vr(m["B"])}, {c}')
        else:
            a(f'v_mfma_f32_32x32x16_bf16 {vr(m["acc"],16)}, {vr(m["buf"])}, {vr(m["B"])}, {c}')
        pump_reads(j)
        cap = cfg.cap_q if j < J_S else (cfg.cap_s if j < J_V + 16 else cfg.cap_v)
        n = 0
        while pend and n < 4:
            op = pend.pop(0); emit_op(op); n += 1
            if isinstance(op, tuple): break
        if J_S <= j < J_V + 16:
            credit[0] = min(credit[0] + cfg.wcap_s, cfg.wcap_s + 1.0); cap = credit[0]
        n = 0
        while fq < len(FQ) and FQ[fq][0] <= j and n < cap:
            op = FQ[fq][2]
            wgt = 2 if isinstance(op, str) and op.startswith('v_exp') else 1
            emit_op(op); fq += 1; n += wgt; credit[0] -= wgt
            if isinstance(op, tuple) and 'buffer_' in str(op[0]): break
    while fq < len(FQ):
        emit_op(FQ[fq][2]); fq += 1
    if cfg.stamps:
        stamp()
        vm.wait_all()
        stamp()
        a(f'''s_add_u32 s{SWF}, s58, {64<<20}
        s_addc_u32 s{SWF+1}, s59, 0
        s_mov_b32 s{SWF+2}, {256*8*256}
        s_lshl_b32 s{sT0}, s2, 3
        s_add_u32 s{sT0}, s{sT0}, s{sW}
        s_lshl_b32 s{sT0}, s{sT0}, 8
        v_mov_b32 v1, s{sT0}''')
        a(f's_memrealtime s[60:61]\ns_waitcnt lgkmcnt(0)\nv_mov_b32 v2, s98\nbuffer_store_dword v2, v1, {srd(SWF)}, 0 offen offset:240\nv_mov_b32 v2, s60\nbuffer_store_dword v2, v1, {srd(SWF)}, 0 offen offset:244')
        for i in range(nst[0]):
            a(f'v_mov_b32 v2, s{62+i}\nbuffer_store_dword v2, v1, {srd(SWF)}, 0 offen offset:{4*i}')
        print('stamps:', nst[0])
    a(f'{name}_exit:\ns_endpgm')
    for t in stubs:
        a(f'{name}_stub{t}:\ns_call_b64 s[{sRet}:{sRet+1}], {name}_rescale\ns_branch {name}_ret{t}')
    a(f'''{name}_rescale:
    s_nop 7
    v_mov_b32 v{vT0}, v{vMx}
    s_nop 1
    v_permlane32_swap_b32 v{vT0}, v{vMx}
    v_max_f32 v{vMx}, v{vMx}, v{vT0}
    v_mul_f32 v{vT0}, s{sC}, v{vMx}
    v_ceil_f32 v{vT0}, v{vT0}
    v_sub_f32 v{vT1}, 0, v{vNegM}
    v_max_f32 v{vT0}, v{vT0}, v{vT1}
    v_sub_f32 v{vT1}, v{vT0}, v{vT1}
    v_min_f32 v{vT1}, {fbits(255.0):#x}, v{vT1}
    v_sub_f32 v{vNegM}, 0, v{vT0}
    v_add_f32 v{vThr}, {fbits(cfg.T):#x}, v{vT0}
    v_mul_f32 v{vThr}, {fbits(1.0/C_SCALE):#x}, v{vThr}
    v_cvt_u32_f32 v{vT1}, v{vT1}
    v_sub_u32 v{vT0}, 0, v{vT1}
    v_ldexp_f32 v{vL0}, v{vL0}, v{vT0}
    v_ldexp_f32 v{vL1}, v{vL1}, v{vT0}
    v_mul_u32_u24 v{vT1}, 0x800080, v{vT1}
    ''')
    for i in range(128):
        a(f'v_pk_sub_u16 v{PB+i}, v{PB+i}, v{vT1} clamp')
    a(f's_nop 7\ns_setpc_b64 s[{sRet}:{sRet+1}]')
    a.autopad()
    assert a.check() == 0
    kd = dict(vgpr=256, acc=256, sgpr=102 if cfg.stamps else 64)
    return name, a, kd

def gen_k2():
    a = Asm()
    name = 'mha_oproj_kernel'
    NS = cfg.k2_ns
    a(f'.globl {name}\n.p2align 8\n.type {name},@function\n{name}:')
    SOF, SWF, SOUT = 4, 8, 12
    sW, sQB, sCB, sT0, sT1 = 16, 17, 18, 19, 20
    sB0, sA0 = 24, 28
    voff, vT0, vT1, vLw, vLr, vOut = 1, 2, 3, 4, 5, 6
    ST0 = 8
    ACCOFF = ((ST0 + 44*NS + 3) // 4) * 4
    srd = lambda s: f's[{s}:{s+3}]'
    a(f'''
    s_cmp_ge_u32 s2, 240
    s_cbranch_scc1 {name}_exit
    s_load_dwordx2 s[40:41], s[0:1], 40
    s_load_dwordx2 s[42:43], s[0:1], 56
    {'s_memtime s[100:101]' if cfg.st2 else ''}
    {'s_memrealtime s[98:99]' if cfg.st2 else ''}
    v_lshrrev_b32 v1, 6, v0
    v_and_b32 v0, 63, v0
    s_and_b32 s{sT0}, s2, 7
    v_readfirstlane_b32 s{sW}, v1
    s_lshr_b32 s{sT1}, s2, 3
    s_mul_i32 s{sT0}, s{sT0}, 30
    s_add_u32 s{sT0}, s{sT0}, s{sT1}
    s_lshr_b32 s{sQB}, s{sT0}, 2
    s_and_b32 s{sCB}, s{sT0}, 3
    s_lshl_b32 s{sT0}, s{sW}, 15
    v_lshlrev_b32 v{voff}, 4, v0
    v_add_u32 v{voff}, s{sT0}, v{voff}
    s_waitcnt lgkmcnt(0)
    s_lshl_b32 s{sT0}, s{sQB}, 19
    s_add_u32 s{SOF}, s42, s{sT0}
    s_addc_u32 s{SOF+1}, s43, 0
    s_mov_b32 s{SOF+2}, {4*131072}
    s_mov_b32 s{SOF+3}, 0x20000
    s_mul_i32 s{sT0}, s{sCB}, {7*131072}
    s_add_u32 s{sT0}, s{sT0}, {WOF_OFF}
    s_add_u32 s{SWF}, s42, s{sT0}
    s_addc_u32 s{SWF+1}, s43, 0
    s_mov_b32 s{SWF+2}, {7*131072}
    s_mov_b32 s{SWF+3}, 0x20000
    ''')
    for i in range(4): a(f's_mov_b32 s{sB0+i}, {i*131072}')
    for i in range(7): a(f's_mov_b32 s{sA0+i}, {i*131072}')
    vm = Tracker(a, 'vmcnt', 62)
    lg = Tracker(a, 'lgkmcnt', 15)
    def breg(k, qt): return ST0 + 44*(k % NS) + 4*qt
    def areg(k, ct): return ST0 + 44*(k % NS) + 16 + 4*ct
    def acc(ct, qt): return 4*(4*ct + qt)
    def load_ops(k):
        ops = []
        if k % 4 == 0 and k > 0:
            ops += [f's_add_u32 s{sB0+i}, s{sB0+i}, 4096' for i in range(4)]
            ops += [f's_add_u32 s{sA0+i}, s{sA0+i}, 4096' for i in range(7)]
        for qt in range(4):
            ops.append((f'buffer_load_dwordx4 {vr(breg(k,qt))}, v{voff}, {srd(SOF)}, s{sB0+qt} offen offset:{(k%4)*1024} {cfg.k2f.replace("+"," ")}', ('b', k, qt)))
        for ct in range(7):
            ops.append((f'buffer_load_dwordx4 {vr(areg(k,ct))}, v{voff}, {srd(SWF)}, s{sA0+ct} offen offset:{(k%4)*1024}', ('a', k, ct)))
        return ops
    def emit_op(op):
        if isinstance(op, tuple):
            a(op[0]); vm.issue(op[1])
        else: a(op)
    for k in range(NS - 1):
        for op in load_ops(k): emit_op(op)
    a(f'''
    s_mov_b32 s{SOUT}, s40
    s_mov_b32 s{SOUT+1}, s41
    s_mov_b32 s{SOUT+2}, {3840*896}
    s_mov_b32 s{SOUT+3}, 0x20000
    s_lshl_b32 s{sT0}, s{sQB}, 6
    s_lshl_b32 s{sT1}, s{sW}, 4
    s_add_u32 s{sT0}, s{sT0}, s{sT1}
    v_and_b32 v{vT0}, 15, v0
    v_add_u32 v{vT0}, s{sT0}, v{vT0}
    v_mul_u32_u24 v{vOut}, 896, v{vT0}
    v_lshrrev_b32 v{vT1}, 4, v0
    v_lshl_add_u32 v{vOut}, v{vT1}, 3, v{vOut}
    s_mul_i32 s{sT0}, s{sCB}, 224
    v_add_u32 v{vOut}, s{sT0}, v{vOut}
    v_lshlrev_b32 v{vLw}, 4, v0
    s_mul_i32 s{sT0}, s{sW}, {21*1024}
    v_add_u32 v{vLr}, s{sT0}, v{vLw}
    ''')
    nst = [1]
    if cfg.st2: a('s_mov_b32 s62, s98' if cfg.rt else 's_mov_b32 s62, s100')
    def stamp():
        if not cfg.st2: return
        a(f's_{"memrealtime" if cfg.rt else "memtime"} s[60:61]\ns_waitcnt lgkmcnt(0)\ns_mov_b32 s{62+nst[0]}, s60'); nst[0] += 1
    stamp()
    for k in range(32):
        pend = load_ops(k + NS - 1) if k + NS - 1 < 32 else []
        n = 0
        if cfg.st2 and k % cfg.st2 == 0:
            vm.wait(('a', k, 0)); stamp()
        for ct in range(7):
            for qt in range(4):
                if qt == 0: vm.wait(('a', k, ct))
                c = '0' if k == 0 else f'a[{acc(ct,qt)}:{acc(ct,qt)+3}]'
                a(f'v_mfma_f32_16x16x32_bf16 a[{acc(ct,qt)}:{acc(ct,qt)+3}], {vr(areg(k,ct))}, {vr(breg(k,qt))}, {c}')
                n += 1
                if n % 2 == 0:
                    while pend:
                        op = pend.pop(0); emit_op(op)
                        if isinstance(op, tuple): break
        for op in pend: emit_op(op)
    stamp()
    a(f'v_add_u32 v{vT0}, 0x10000, v{vLw}')
    for w in range(4):
        a(f's_cmp_eq_u32 s{sW}, {w}\ns_cbranch_scc0 {name}_wr{w}')
        a('s_nop 7')
        cnt = 0
        for d in range(4):
            if d == w: continue
            sl = (w - d - 1) % 4
            for ct in range(7):
                off = d*21*1024 + sl*7*1024 + ct*1024
                ar = vLw if off < 65536 else vT0
                a(f'ds_write_b128 v{ar}, a[{acc(ct,d)}:{acc(ct,d)+3}] offset:{off % 65536}')
                cnt += 1
                if cnt == 14: a('s_waitcnt lgkmcnt(7)')
        for ct in range(7):
            for r in range(4):
                a(f'v_accvgpr_read_b32 v{ST0+96+4*ct+r}, a{acc(ct,w)+r}')
        a(f'{name}_wr{w}:')
    a('s_waitcnt lgkmcnt(0)\ns_barrier')
    R = ST0 + 96
    idx = [(sl, ct) for sl in range(3) for ct in range(7)]
    def rdn(n):
        sl, ct = idx[n]
        a(f'ds_read_b128 {vr(ST0+4*n)}, v{vLr} offset:{sl*7*1024+ct*1024}'); lg.issue((sl, ct))
    for n in range(14): rdn(n)
    for n, (sl, ct) in enumerate(idx):
        lg.wait((sl, ct))
        if n + 14 < 21: rdn(n + 14)
        for r in range(4):
            a(f'v_add_f32 v{R+4*ct+r}, v{R+4*ct+r}, v{ST0+4*n+r}')
    for ct in range(7):
        a(f'v_cvt_pk_bf16_f32 v{ST0+2*ct}, v{R+4*ct}, v{R+4*ct+1}')
        a(f'v_cvt_pk_bf16_f32 v{ST0+2*ct+1}, v{R+4*ct+2}, v{R+4*ct+3}')
        a(f'buffer_store_dwordx2 {vr(ST0+2*ct,2)}, v{vOut}, {srd(SOUT)}, 0 offen offset:{32*ct}')
    if cfg.st2:
        stamp()
        a('s_waitcnt vmcnt(0)')
        stamp()
        a(f'''s_add_u32 s{SWF}, s42, {64<<20}
        s_addc_u32 s{SWF+1}, s43, 0
        s_mov_b32 s{SWF+2}, {256*8*256}
        s_lshl_b32 s{sT0}, s2, 3
        s_add_u32 s{sT0}, s{sT0}, s{sW}
        s_lshl_b32 s{sT0}, s{sT0}, 8
        v_mov_b32 v1, s{sT0}''')
        a(f's_memrealtime s[60:61]\ns_waitcnt lgkmcnt(0)\nv_mov_b32 v2, s98\nbuffer_store_dword v2, v1, {srd(SWF)}, 0 offen offset:240\nv_mov_b32 v2, s60\nbuffer_store_dword v2, v1, {srd(SWF)}, 0 offen offset:244')
        for i in range(nst[0]):
            a(f'v_mov_b32 v2, s{62+i}\nbuffer_store_dword v2, v1, {srd(SWF)}, 0 offen offset:{4*i}')
        print('stamps2:', nst[0])
    a(f'{name}_exit:\ns_endpgm')
    a.autopad()
    assert a.check() == 0
    kd = dict(vgpr=ACCOFF + 112, acc=ACCOFF, sgpr=102 if cfg.st2 else 48)
    return name, a, kd

def kdtext(name, kd):
    return f'''.p2align 6
.amdhsa_kernel {name}
  .amdhsa_next_free_vgpr {kd['vgpr']}
  .amdhsa_next_free_sgpr {kd['sgpr']}
  .amdhsa_accum_offset {kd['acc']}
  .amdhsa_group_segment_fixed_size 0
  .amdhsa_kernarg_size 64
  .amdhsa_user_sgpr_count 2
  .amdhsa_user_sgpr_kernarg_segment_ptr 1
  .amdhsa_system_sgpr_workgroup_id_x 1
.end_amdhsa_kernel
'''

def main(out):
    n1, a1, k1 = gen_k1()
    n2, a2, k2 = gen_k2()
    hdr = f'''; Fused MHA block (B16 Sq240 D448 H16 Sk512 Dh256), generated by a hand-written generator script.
; @launch kernel={n1} grid=(256,1,1) block=(512,1,1) lds={LDS1}
; @launch kernel={n2} grid=(240,1,1) block=(256,1,1) lds={84*1024}
.amdgcn_target "amdgcn-amd-amdhsa--gfx950"
.text
'''
    s = hdr + a1.text() + a2.text() + '.section .rodata,"a"\n' + kdtext(n1, k1) + kdtext(n2, k2)
    open(out, 'w').write(s)
    print('wrote', out, len(s), 'bytes;', len(a1.ins), len(a2.ins), 'lines')

if __name__ == '__main__':
    outs = [x for x in sys.argv[1:] if '=' not in x]
    main(outs[0] if outs else 'standalone__mha_block_cached__near_ridge.s')
```
